```python
import torch

def _softmax(x, axis=-1):
    return torch.softmax(x, dim=axis)
def _gelu(x):
    return torch.nn.functional.gelu(x, approximate="tanh")
def _silu(x):
    return torch.nn.functional.silu(x)
def _sigmoid(x):
    return torch.sigmoid(x)
def _layernorm(x, axis=-1, eps=1e-5):
    m = x.mean(dim=axis, keepdim=True)
    v = x.var(dim=axis, keepdim=True, unbiased=False)
    return (x - m) / torch.sqrt(v + eps)
def _scatter_add(tgt, idx, src, axis=0):
    return tgt.clone().index_add_(axis, idx, src)
def _segment_sum(src, seg, n):
    out = torch.zeros((n,) + src.shape[1:], dtype=src.dtype)
    return out.index_add_(0, seg, src)
def _pad(x, pw):
    flat = tuple(v for pair in reversed(pw) for v in pair)
    return torch.nn.functional.pad(x, flat)

kernel_name = 'standalone__instancenorm__sampling'

def setup_inputs():

    _w = (lambda a: (lambda t: t.to(torch.bfloat16) if t.is_floating_point() else t)(torch.as_tensor(a)))
    B, C, H, W = 64, 512, 8, 32
    return {
        "x": _w(abs((lambda *s: torch.randn(*s, dtype=torch.bfloat16) * 0.05)(B, C, H, W))),
        "g": _w((lambda *s: torch.randn(*s, dtype=torch.bfloat16) * 0.05)(C) + 1.0),
        "b": _w((lambda *s: torch.randn(*s, dtype=torch.bfloat16) * 0.4)(C)),
    }

def reference(x, g, b):
    mu = x.mean(axis=(-2, -1), keepdims=True)
    var = ((x - mu) ** 2).mean(axis=(-2, -1), keepdims=True)
    xhat = (x - mu) / torch.sqrt(var + 1e-5)
    return xhat * g.reshape(1, -1, 1, 1) + b.reshape(1, -1, 1, 1)
```

```python
import sys, math

HEADER = """; Kernarg layout for this problem (48 bytes, ptrs only, base s[0:1]):
"""

NAME = "standalone__instancenorm__sampling_kernel"

def gen(W=4, U=1, ldf="", stf="", gbf=""):
    L = []
    e = L.append
    nblk = 32768 // (4 * W * U)
    lgU = int(math.log2(U))
    e(HEADER.rstrip())
    e(f"; @launch grid=({nblk},1,1) block=({64*W},1,1) lds=0")
    e('.amdgcn_target "amdgcn-amd-amdhsa--gfx950"')
    e(".text")
    e(f".globl {NAME}")
    e(".p2align 8")
    e(f".type {NAME},@function")
    e(f"{NAME}:")
    e("    s_load_dwordx8 s[4:11], s[0:1], 0")
    e(f"    s_cmp_ge_u32 s2, {nblk}")
    e("    s_cbranch_scc1 L_end")
    vA, vG = 1, 2
    ngb = max(1, U // 2)
    def al(x, a): return (x + a - 1) // a * a
    rG = al(3, 2)
    rB = al(rG + ngb, 2)
    rS = al(rB + ngb, 2)
    rT = rS + 8
    rX = rT + 16
    nv = rX + 8 * U
    e("    v_lshrrev_b32 v3, 4, v0")
    e("    v_and_b32 v1, 15, v0")
    e("    v_lshlrev_b32 v1, 4, v1")
    e(f"    s_lshl_b32 s3, s2, {int(math.log2(2048*W*U))}")
    e(f"    v_lshl_add_u32 v1, v3, {9+lgU}, v1")
    e("    v_add_u32 v1, s3, v1")
    e(f"    v_lshrrev_b32 v2, 8, v1")
    e(f"    v_and_b32 v2, 0x3fe, v2")
    e("    s_mov_b32 s12, 0xffff0000")
    e("    s_waitcnt lgkmcnt(0)")
    def rng(b, n): return f"v{b}" if n == 1 else f"v[{b}:{b+n-1}]"
    gld = {1: "global_load_ushort", 2: "global_load_dword", 4: "global_load_dwordx2", 8: "global_load_dwordx4"}[U]
    e(f"    {gld} {rng(rG, ngb)}, v{vG}, s[6:7] {gbf}")
    e(f"    {gld} {rng(rB, ngb)}, v{vG}, s[8:9] {gbf}")
    for u in range(U):
        for h in range(2):
            b = rX + 8 * u + 4 * h
            e(f"    global_load_dwordx4 v[{b}:{b+3}], v{vA}, s[4:5] offset:{u*512+h*256} {ldf}")
    def P(i): return f"v[{i}:{i+1}]"
    def dpp(r):
        for n in (8, 4, 2, 1):
            e("    s_nop 1")
            e(f"    v_add_f32_dpp v{r}, v{r}, v{r} row_ror:{n} row_mask:0xf bank_mask:0xf")
    for u in range(U):
        x = rX + 8 * u
        e(f"    s_waitcnt vmcnt({2*U-2})")
        for j in range(8):
            e(f"    v_lshlrev_b32 v{rT+2*j}, 16, v{x+j}")
            e(f"    v_and_b32 v{rT+2*j+1}, s12, v{x+j}")
        for k in range(4):
            e(f"    v_pk_add_f32 {P(rS+2*k)}, {P(rT+4*k)}, {P(rT+4*k+2)}")
        e(f"    v_pk_add_f32 {P(rS)}, {P(rS)}, {P(rS+2)}")
        e(f"    v_pk_add_f32 {P(rS+4)}, {P(rS+4)}, {P(rS+6)}")
        e(f"    v_pk_add_f32 {P(rS)}, {P(rS)}, {P(rS+4)}")
        e(f"    v_add_f32 v{rS}, v{rS}, v{rS+1}")
        dpp(rS)
        e(f"    v_mul_f32 v{rS}, 0xbb800000, v{rS}")
        for j in range(8):
            e(f"    v_pk_add_f32 {P(rT+2*j)}, {P(rT+2*j)}, {P(rS)} op_sel_hi:[1,0]")
        e(f"    v_pk_mul_f32 {P(rS)}, {P(rT)}, {P(rT)}")
        e(f"    v_pk_mul_f32 {P(rS+2)}, {P(rT+2)}, {P(rT+2)}")
        for j in range(2, 8):
            a = rS + 2 * (j & 1)
            e(f"    v_pk_fma_f32 {P(a)}, {P(rT+2*j)}, {P(rT+2*j)}, {P(a)}")
        e(f"    v_pk_add_f32 {P(rS)}, {P(rS)}, {P(rS+2)}")
        gsrc, bsrc = rG + u // 2, rB + u // 2
        if u % 2 == 0:
            e(f"    v_lshlrev_b32 v{rS+4}, 16, v{gsrc}")
            e(f"    v_lshlrev_b32 v{rS+6}, 16, v{bsrc}")
        else:
            e(f"    v_and_b32 v{rS+4}, s12, v{gsrc}")
            e(f"    v_and_b32 v{rS+6}, s12, v{bsrc}")
        e(f"    v_add_f32 v{rS}, v{rS}, v{rS+1}")
        e(f"    v_mul_f32 v{rS+4}, 0x41800000, v{rS+4}")
        dpp(rS)
        e(f"    v_add_f32 v{rS}, 0x3b27c5ac, v{rS}")
        e(f"    v_rsq_f32 v{rS}, v{rS}")
        e("    s_nop 0")
        e(f"    v_mul_f32 v{rS+4}, v{rS}, v{rS+4}")
        for j in range(8):
            e(f"    v_pk_fma_f32 {P(rT+2*j)}, {P(rT+2*j)}, {P(rS+4)}, {P(rS+6)} op_sel_hi:[1,0,0]")
        for j in range(8):
            e(f"    v_cvt_pk_bf16_f32 v{x+j}, v{rT+2*j}, v{rT+2*j+1}")
        for h in range(2):
            b = x + 4 * h
            e(f"    global_store_dwordx4 v{vA}, v[{b}:{b+3}], s[10:11] offset:{u*512+h*256} {stf}")
    e("L_end:")
    e("    s_endpgm")
    e('.section .rodata,"a"')
    e(".p2align 6")
    e(f".amdhsa_kernel {NAME}")
    e(f"  .amdhsa_next_free_vgpr {nv}")
    e("  .amdhsa_next_free_sgpr 16")
    e(f"  .amdhsa_accum_offset {al(nv,4)}")
    e("  .amdhsa_group_segment_fixed_size 0")
    e("  .amdhsa_kernarg_size 48")
    e("  .amdhsa_user_sgpr_count 2")
    e("  .amdhsa_user_sgpr_kernarg_segment_ptr 1")
    e("  .amdhsa_system_sgpr_workgroup_id_x 1")
    e("  .amdhsa_float_denorm_mode_32 3")
    e(".end_amdhsa_kernel")
    return "\n".join(l.rstrip() for l in L) + "\n"

if __name__ == "__main__":
    kw = {}
    out = sys.argv[1]
    for a in sys.argv[2:]:
        k, v = a.split("=")
        kw[k] = int(v) if v.isdigit() else v.replace("+", " ")
    open(out, "w").write(gen(**kw))
```

```python
import sys, math

HEADER = """; Kernarg layout for this problem (48 bytes, ptrs only, base s[0:1]):
"""

NAME = "standalone__instancenorm__sampling_kernel"

def gen(W=4, U=1, ldf="", stf="", gbf="", ts=0):
    L = []
    e = L.append
    nblk = 32768 // (4 * W * U)
    lgU = int(math.log2(U))
    e(HEADER.rstrip())
    e(f"; @launch grid=({nblk},1,1) block=({64*W},1,1) lds=0")
    e('.amdgcn_target "amdgcn-amd-amdhsa--gfx950"')
    e(".text")
    e(f".globl {NAME}")
    e(".p2align 8")
    e(f".type {NAME},@function")
    e(f"{NAME}:")
    if ts:
        e("    s_memrealtime s[20:21]")
        e("    s_memtime s[28:29]")
        e("    s_load_dwordx2 s[14:15], s[0:1], 40")
    e("    s_load_dwordx8 s[4:11], s[0:1], 0")
    e(f"    s_cmp_ge_u32 s2, {nblk}")
    e("    s_cbranch_scc1 L_end")
    vA, vG = 1, 2
    ngb = max(1, U // 2)
    def al(x, a): return (x + a - 1) // a * a
    rG = al(3, 2)
    rB = al(rG + ngb, 2)
    rS = al(rB + ngb, 2)
    rT = rS + 8
    rX = rT + 16
    nv = rX + 8 * U
    e("    v_lshrrev_b32 v3, 4, v0")
    e("    v_and_b32 v1, 15, v0")
    e("    v_lshlrev_b32 v1, 4, v1")
    e(f"    s_lshl_b32 s3, s2, {int(math.log2(2048*W*U))}")
    e(f"    v_lshl_add_u32 v1, v3, {9+lgU}, v1")
    e("    v_add_u32 v1, s3, v1")
    e(f"    v_lshrrev_b32 v2, 8, v1")
    e(f"    v_and_b32 v2, 0x3fe, v2")
    e("    s_mov_b32 s12, 0xffff0000")
    e("    s_waitcnt lgkmcnt(0)")
    if ts:
        e("    s_memrealtime s[22:23]")
    def rng(b, n): return f"v{b}" if n == 1 else f"v[{b}:{b+n-1}]"
    gld = {1: "global_load_ushort", 2: "global_load_dword", 4: "global_load_dwordx2", 8: "global_load_dwordx4"}[U]
    e(f"    {gld} {rng(rG, ngb)}, v{vG}, s[6:7] {gbf}")
    e(f"    {gld} {rng(rB, ngb)}, v{vG}, s[8:9] {gbf}")
    for u in range(U):
        for h in range(2):
            b = rX + 8 * u + 4 * h
            e(f"    global_load_dwordx4 v[{b}:{b+3}], v{vA}, s[4:5] offset:{u*512+h*256} {ldf}")
    def P(i): return f"v[{i}:{i+1}]"
    def dpp(r):
        for n in (8, 4, 2, 1):
            e("    s_nop 1")
            e(f"    v_add_f32_dpp v{r}, v{r}, v{r} row_ror:{n} row_mask:0xf bank_mask:0xf")
    for u in range(U):
        x = rX + 8 * u
        e(f"    s_waitcnt vmcnt({2*U-2})")
        if ts and u == 0:
            e("    s_memrealtime s[24:25]")
        if ts and u == U - 1:
            e("    s_memrealtime s[32:33]")
        for j in range(8):
            e(f"    v_lshlrev_b32 v{rT+2*j}, 16, v{x+j}")
            e(f"    v_and_b32 v{rT+2*j+1}, s12, v{x+j}")
        for k in range(4):
            e(f"    v_pk_add_f32 {P(rS+2*k)}, {P(rT+4*k)}, {P(rT+4*k+2)}")
        e(f"    v_pk_add_f32 {P(rS)}, {P(rS)}, {P(rS+2)}")
        e(f"    v_pk_add_f32 {P(rS+4)}, {P(rS+4)}, {P(rS+6)}")
        e(f"    v_pk_add_f32 {P(rS)}, {P(rS)}, {P(rS+4)}")
        e(f"    v_add_f32 v{rS}, v{rS}, v{rS+1}")
        dpp(rS)
        e(f"    v_mul_f32 v{rS}, 0xbb800000, v{rS}")
        for j in range(8):
            e(f"    v_pk_add_f32 {P(rT+2*j)}, {P(rT+2*j)}, {P(rS)} op_sel_hi:[1,0]")
        e(f"    v_pk_mul_f32 {P(rS)}, {P(rT)}, {P(rT)}")
        e(f"    v_pk_mul_f32 {P(rS+2)}, {P(rT+2)}, {P(rT+2)}")
        for j in range(2, 8):
            a = rS + 2 * (j & 1)
            e(f"    v_pk_fma_f32 {P(a)}, {P(rT+2*j)}, {P(rT+2*j)}, {P(a)}")
        e(f"    v_pk_add_f32 {P(rS)}, {P(rS)}, {P(rS+2)}")
        gsrc, bsrc = rG + u // 2, rB + u // 2
        if u % 2 == 0:
            e(f"    v_lshlrev_b32 v{rS+4}, 16, v{gsrc}")
            e(f"    v_lshlrev_b32 v{rS+6}, 16, v{bsrc}")
        else:
            e(f"    v_and_b32 v{rS+4}, s12, v{gsrc}")
            e(f"    v_and_b32 v{rS+6}, s12, v{bsrc}")
        e(f"    v_add_f32 v{rS}, v{rS}, v{rS+1}")
        e(f"    v_mul_f32 v{rS+4}, 0x41800000, v{rS+4}")
        dpp(rS)
        e(f"    v_add_f32 v{rS}, 0x3b27c5ac, v{rS}")
        e(f"    v_rsq_f32 v{rS}, v{rS}")
        e("    s_nop 0")
        e(f"    v_mul_f32 v{rS+4}, v{rS}, v{rS+4}")
        for j in range(8):
            e(f"    v_pk_fma_f32 {P(rT+2*j)}, {P(rT+2*j)}, {P(rS+4)}, {P(rS+6)} op_sel_hi:[1,0,0]")
        for j in range(8):
            e(f"    v_cvt_pk_bf16_f32 v{x+j}, v{rT+2*j}, v{rT+2*j+1}")
        for h in range(2):
            b = x + 4 * h
            e(f"    global_store_dwordx4 v{vA}, v[{b}:{b+3}], s[10:11] offset:{u*512+h*256} {stf}")
    if ts:
        e("    s_memrealtime s[34:35]")
        e("    s_waitcnt vmcnt(0)")
        e("    s_memrealtime s[26:27]")
        e("    s_memtime s[30:31]")
        e("    s_getreg_b32 s16, hwreg(HW_REG_XCC_ID)")
        e("    s_getreg_b32 s17, hwreg(HW_REG_HW_ID)")
        e("    s_waitcnt lgkmcnt(0)")
        e("    s_sub_u32 s28, s30, s28")
        e("    v_lshrrev_b32 v3, 6, v0")
        e(f"    s_mul_i32 s3, s2, {W}")
        e("    v_add_u32 v3, s3, v3")
        e("    v_lshlrev_b32 v3, 6, v3")
        for i, r in enumerate((20, 22, 24, 32, 34, 26, 28, 16, 17)):
            e(f"    v_mov_b32 v{8+i}, s{r}")
        e("    v_and_b32 v2, 63, v0")
        e("    v_cmp_eq_u32 vcc, 0, v2")
        e("    s_and_saveexec_b64 s[18:19], vcc")
        e("    global_store_dwordx4 v3, v[8:11], s[14:15]")
        e("    global_store_dwordx4 v3, v[12:15], s[14:15] offset:16")
        e("    global_store_dword v3, v16, s[14:15] offset:32")
    e("L_end:")
    e("    s_endpgm")
    e('.section .rodata,"a"')
    e(".p2align 6")
    e(f".amdhsa_kernel {NAME}")
    e(f"  .amdhsa_next_free_vgpr {nv}")
    e(f"  .amdhsa_next_free_sgpr {40 if ts else 16}")
    e(f"  .amdhsa_accum_offset {al(nv,4)}")
    e("  .amdhsa_group_segment_fixed_size 0")
    e("  .amdhsa_kernarg_size 48")
    e("  .amdhsa_user_sgpr_count 2")
    e("  .amdhsa_user_sgpr_kernarg_segment_ptr 1")
    e("  .amdhsa_system_sgpr_workgroup_id_x 1")
    e("  .amdhsa_float_denorm_mode_32 3")
    e(".end_amdhsa_kernel")
    return "\n".join(l.rstrip() for l in L) + "\n"

if __name__ == "__main__":
    kw = {}
    out = sys.argv[1]
    for a in sys.argv[2:]:
        k, v = a.split("=")
        kw[k] = int(v) if v.isdigit() else v.replace("+", " ")
    open(out, "w").write(gen(**kw))
```

```python
import sys, math

HEADER = """; Kernarg layout for this problem (48 bytes, ptrs only, base s[0:1]):
"""

NAME = "standalone__instancenorm__sampling_kernel"

def gen(W=4, U=1, ldf="", stf="", gbf="", ts=0):
    L = []
    e = L.append
    nblk = 32768 // (4 * W * U)
    lgU = int(math.log2(U))
    e(HEADER.rstrip())
    e(f"; @launch grid=({nblk},1,1) block=({64*W},1,1) lds=0")
    e('.amdgcn_target "amdgcn-amd-amdhsa--gfx950"')
    e(".text")
    e(f".globl {NAME}")
    e(".p2align 8")
    e(f".type {NAME},@function")
    e(f"{NAME}:")
    if ts:
        e("    s_memrealtime s[20:21]")
        e("    s_memtime s[28:29]")
        e(f"    s_load_dwordx2 s[14:15], s[0:1], {40 if ts == 1 else 32}")
    e("    s_load_dwordx8 s[4:11], s[0:1], 0")
    e(f"    s_cmp_ge_u32 s2, {nblk}")
    e("    s_cbranch_scc1 L_end")
    vA, vG = 1, 2
    ngb = max(1, U // 2)
    def al(x, a): return (x + a - 1) // a * a
    rG = al(3, 2)
    rB = al(rG + ngb, 2)
    rS = al(rB + ngb, 2)
    rT = rS + 8
    rX = rT + 16
    nv = rX + 8 * U
    e("    v_lshrrev_b32 v3, 4, v0")
    e("    v_and_b32 v1, 15, v0")
    e("    v_lshlrev_b32 v1, 4, v1")
    e(f"    s_lshl_b32 s3, s2, {int(math.log2(2048*W*U))}")
    e(f"    v_lshl_add_u32 v1, v3, {9+lgU}, v1")
    e("    v_add_u32 v1, s3, v1")
    e(f"    v_lshrrev_b32 v2, 8, v1")
    e(f"    v_and_b32 v2, 0x3fe, v2")
    e("    s_mov_b32 s12, 0xffff0000")
    e("    s_waitcnt lgkmcnt(0)")
    if ts:
        e("    s_memrealtime s[22:23]")
    def rng(b, n): return f"v{b}" if n == 1 else f"v[{b}:{b+n-1}]"
    gld = {1: "global_load_ushort", 2: "global_load_dword", 4: "global_load_dwordx2", 8: "global_load_dwordx4"}[U]
    e(f"    {gld} {rng(rG, ngb)}, v{vG}, s[6:7] {gbf}")
    e(f"    {gld} {rng(rB, ngb)}, v{vG}, s[8:9] {gbf}")
    for u in range(U):
        for h in range(2):
            b = rX + 8 * u + 4 * h
            e(f"    global_load_dwordx4 v[{b}:{b+3}], v{vA}, s[4:5] offset:{u*512+h*256} {ldf}")
    def P(i): return f"v[{i}:{i+1}]"
    def dpp(r):
        for n in (8, 4, 2, 1):
            e("    s_nop 1")
            e(f"    v_add_f32_dpp v{r}, v{r}, v{r} row_ror:{n} row_mask:0xf bank_mask:0xf")
    for u in range(U):
        x = rX + 8 * u
        e(f"    s_waitcnt vmcnt({2*U-2})")
        if ts and u == 0:
            e("    s_memrealtime s[24:25]")
        if ts and u == U - 1:
            e("    s_memrealtime s[32:33]")
        for j in range(8):
            e(f"    v_lshlrev_b32 v{rT+2*j}, 16, v{x+j}")
            e(f"    v_and_b32 v{rT+2*j+1}, s12, v{x+j}")
        for k in range(4):
            e(f"    v_pk_add_f32 {P(rS+2*k)}, {P(rT+4*k)}, {P(rT+4*k+2)}")
        e(f"    v_pk_add_f32 {P(rS)}, {P(rS)}, {P(rS+2)}")
        e(f"    v_pk_add_f32 {P(rS+4)}, {P(rS+4)}, {P(rS+6)}")
        e(f"    v_pk_add_f32 {P(rS)}, {P(rS)}, {P(rS+4)}")
        e(f"    v_add_f32 v{rS}, v{rS}, v{rS+1}")
        dpp(rS)
        e(f"    v_mul_f32 v{rS}, 0xbb800000, v{rS}")
        for j in range(8):
            e(f"    v_pk_add_f32 {P(rT+2*j)}, {P(rT+2*j)}, {P(rS)} op_sel_hi:[1,0]")
        e(f"    v_pk_mul_f32 {P(rS)}, {P(rT)}, {P(rT)}")
        e(f"    v_pk_mul_f32 {P(rS+2)}, {P(rT+2)}, {P(rT+2)}")
        for j in range(2, 8):
            a = rS + 2 * (j & 1)
            e(f"    v_pk_fma_f32 {P(a)}, {P(rT+2*j)}, {P(rT+2*j)}, {P(a)}")
        e(f"    v_pk_add_f32 {P(rS)}, {P(rS)}, {P(rS+2)}")
        gsrc, bsrc = rG + u // 2, rB + u // 2
        if u % 2 == 0:
            e(f"    v_lshlrev_b32 v{rS+4}, 16, v{gsrc}")
            e(f"    v_lshlrev_b32 v{rS+6}, 16, v{bsrc}")
        else:
            e(f"    v_and_b32 v{rS+4}, s12, v{gsrc}")
            e(f"    v_and_b32 v{rS+6}, s12, v{bsrc}")
        e(f"    v_add_f32 v{rS}, v{rS}, v{rS+1}")
        e(f"    v_mul_f32 v{rS+4}, 0x41800000, v{rS+4}")
        dpp(rS)
        e(f"    v_add_f32 v{rS}, 0x3b27c5ac, v{rS}")
        e(f"    v_rsq_f32 v{rS}, v{rS}")
        e("    s_nop 0")
        e(f"    v_mul_f32 v{rS+4}, v{rS}, v{rS+4}")
        for j in range(8):
            e(f"    v_pk_fma_f32 {P(rT+2*j)}, {P(rT+2*j)}, {P(rS+4)}, {P(rS+6)} op_sel_hi:[1,0,0]")
        for j in range(8):
            e(f"    v_cvt_pk_bf16_f32 v{x+j}, v{rT+2*j}, v{rT+2*j+1}")
        for h in range(2):
            b = x + 4 * h
            e(f"    global_store_dwordx4 v{vA}, v[{b}:{b+3}], s[10:11] offset:{u*512+h*256} {stf}")
    if ts:
        e("    s_memrealtime s[34:35]")
        e("    s_waitcnt vmcnt(0)")
        e("    s_memrealtime s[26:27]")
        e("    s_memtime s[30:31]")
        e("    s_getreg_b32 s16, hwreg(HW_REG_XCC_ID)")
        e("    s_getreg_b32 s17, hwreg(HW_REG_HW_ID)")
        e("    s_waitcnt lgkmcnt(0)")
        e("    s_sub_u32 s28, s30, s28")
    if ts == 2:
        lane = 0
        for r in (20, 22, 24, 32, 26):
            e(f"    s_not_b32 s3, s{r}")
            e(f"    v_writelane_b32 v8, s3, {lane}")
            e(f"    v_writelane_b32 v8, s{r}, {lane+1}")
            lane += 2
        e(f"    v_writelane_b32 v8, s28, {lane}")
        e("    s_sub_u32 s3, s26, s20")
        e(f"    v_writelane_b32 v8, s3, {lane+1}")
        e("    s_sub_u32 s3, s22, s20")
        e(f"    v_writelane_b32 v8, s3, {lane+2}")
        e("    s_sub_u32 s3, s24, s22")
        e(f"    v_writelane_b32 v8, s3, {lane+3}")
        e("    s_not_b32 s3, s3")
        e(f"    v_writelane_b32 v8, s3, {lane+4}")
        e("    s_sub_u32 s3, s26, s34")
        e(f"    v_writelane_b32 v8, s3, {lane+5}")
        e("    v_and_b32 v3, 63, v0")
        e("    v_lshlrev_b32 v3, 2, v3")
        e("    s_mov_b64 exec, 0xffff")
        e("    global_atomic_umax v3, v8, s[14:15]")
    if ts == 1:
        e("    v_lshrrev_b32 v3, 6, v0")
        e(f"    s_mul_i32 s3, s2, {W}")
        e("    v_add_u32 v3, s3, v3")
        e("    v_lshlrev_b32 v3, 6, v3")
        for i, r in enumerate((20, 22, 24, 32, 34, 26, 28, 16, 17)):
            e(f"    v_mov_b32 v{8+i}, s{r}")
        e("    v_and_b32 v2, 63, v0")
        e("    v_cmp_eq_u32 vcc, 0, v2")
        e("    s_and_saveexec_b64 s[18:19], vcc")
        e("    global_store_dwordx4 v3, v[8:11], s[14:15]")
        e("    global_store_dwordx4 v3, v[12:15], s[14:15] offset:16")
        e("    global_store_dword v3, v16, s[14:15] offset:32")
    e("L_end:")
    e("    s_endpgm")
    e('.section .rodata,"a"')
    e(".p2align 6")
    e(f".amdhsa_kernel {NAME}")
    e(f"  .amdhsa_next_free_vgpr {nv}")
    e(f"  .amdhsa_next_free_sgpr {40 if ts else 16}")
    e(f"  .amdhsa_accum_offset {al(nv,4)}")
    e("  .amdhsa_group_segment_fixed_size 0")
    e("  .amdhsa_kernarg_size 48")
    e("  .amdhsa_user_sgpr_count 2")
    e("  .amdhsa_user_sgpr_kernarg_segment_ptr 1")
    e("  .amdhsa_system_sgpr_workgroup_id_x 1")
    e("  .amdhsa_float_denorm_mode_32 3")
    e(".end_amdhsa_kernel")
    return "\n".join(l.rstrip() for l in L) + "\n"

if __name__ == "__main__":
    kw = {}
    out = sys.argv[1]
    for a in sys.argv[2:]:
        k, v = a.split("=")
        kw[k] = int(v) if v.isdigit() else v.replace("+", " ")
    open(out, "w").write(gen(**kw))
```

```python
import sys, math

HEADER = """; Kernarg layout for this problem (48 bytes, ptrs only, base s[0:1]):
"""

NAME = "standalone__instancenorm__sampling_kernel"

def gen(W=4, U=1, ldf="", stf="", gbf="", ts=0, kind="full", aff=0):
    L = []
    e = L.append
    nblk = 32768 // (4 * W * U)
    lgU = int(math.log2(U))
    e(HEADER.rstrip())
    e(f"; @launch grid=({nblk},1,1) block=({64*W},1,1) lds=0")
    e('.amdgcn_target "amdgcn-amd-amdhsa--gfx950"')
    e(".text")
    e(f".globl {NAME}")
    e(".p2align 8")
    e(f".type {NAME},@function")
    e(f"{NAME}:")
    if ts:
        e("    s_memrealtime s[20:21]")
        e("    s_memtime s[28:29]")
        e(f"    s_load_dwordx2 s[14:15], s[0:1], {40 if ts == 1 else 32}")
    e("    s_load_dwordx8 s[4:11], s[0:1], 0")
    e(f"    s_cmp_ge_u32 s2, {nblk}")
    e("    s_cbranch_scc1 L_end")
    vA, vG = 1, 2
    ngb = max(1, U // 2)
    def al(x, a): return (x + a - 1) // a * a
    rG = al(3, 2)
    rB = al(rG + ngb, 2)
    rS = al(rB + ngb, 2)
    rT = rS + 8
    rX = rT + 16
    nv = rX + 8 * U
    e("    v_lshrrev_b32 v3, 4, v0")
    e("    v_and_b32 v1, 15, v0")
    e("    v_lshlrev_b32 v1, 4, v1")
    if not aff:
        e(f"    s_lshl_b32 s3, s2, {int(math.log2(2048*W*U))}")
        e(f"    v_lshl_add_u32 v1, v3, {9+lgU}, v1")
        e("    v_add_u32 v1, s3, v1")
    else:
        assert W * U == 8
        e("    s_lshr_b32 s3, s2, 3")
        e("    s_lshl_b32 s3, s3, 2")
        e("    s_and_b32 s13, s2, 3")
        e("    s_or_b32 s3, s3, s13")
        e("    s_lshl_b32 s3, s3, 15")
        e("    s_lshr_b32 s13, s3, 21")
        e("    s_lshr_b32 s12, s2, 2")
        e("    s_xor_b32 s13, s13, s12")
        e(f"    s_xor_b32 s13, s13, {aff-1}")
        e("    s_and_b32 s13, s13, 1")
        e("    s_lshl_b32 s13, s13, 13")
        e("    s_or_b32 s3, s3, s13")
        e(f"    v_lshl_add_u32 v1, v3, {9+lgU}, v1")
        e("    v_and_b32 v3, 0x2000, v1")
        e("    v_add_u32 v1, v3, v1")
        e("    v_add_u32 v1, s3, v1")
    e(f"    v_lshrrev_b32 v2, 8, v1")
    e(f"    v_and_b32 v2, 0x3fe, v2")
    e("    s_mov_b32 s12, 0xffff0000")
    e("    s_waitcnt lgkmcnt(0)")
    if ts:
        e("    s_memrealtime s[22:23]")
    def rng(b, n): return f"v{b}" if n == 1 else f"v[{b}:{b+n-1}]"
    gld = {1: "global_load_ushort", 2: "global_load_dword", 4: "global_load_dwordx2", 8: "global_load_dwordx4"}[U]
    if kind == "full":
        e(f"    {gld} {rng(rG, ngb)}, v{vG}, s[6:7] {gbf}")
        e(f"    {gld} {rng(rB, ngb)}, v{vG}, s[8:9] {gbf}")
    for u in range(U if kind != "write" else 0):
        for h in range(2):
            b = rX + 8 * u + 4 * h
            if kind == "wr":
                e(f"    global_store_dwordx4 v{vA}, v[{rT}:{rT+3}], s[10:11] offset:{u*512+h*256} {stf}")
            e(f"    global_load_dwordx4 v[{b}:{b+3}], v{vA}, s[4:5] offset:{u*512+h*256} {ldf}")
            if kind == "rw":
                e(f"    global_store_dwordx4 v{vA}, v[{rT}:{rT+3}], s[10:11] offset:{u*512+h*256} {stf}")
    def P(i): return f"v[{i}:{i+1}]"
    def dpp(r):
        for n in (8, 4, 2, 1):
            e("    s_nop 1")
            e(f"    v_add_f32_dpp v{r}, v{r}, v{r} row_ror:{n} row_mask:0xf bank_mask:0xf")
    for u in range(U):
        x = rX + 8 * u
        e(f"    s_waitcnt vmcnt({2*U-2})")
        if ts and u == 0:
            e("    s_memrealtime s[24:25]")
        if ts and u == U - 1:
            e("    s_memrealtime s[32:33]")
        if kind != "full":
            if kind in ("rw", "wr"):
                pass
            elif kind == "read":
                L.pop() if not ts else None
                e(f"    s_waitcnt vmcnt({2*(U-1-u)})")
            else:
                for h in range(2):
                    b = x + 4 * h
                    e(f"    global_store_dwordx4 v{vA}, v[{b}:{b+3}], s[10:11] offset:{u*512+h*256} {stf}")
            continue
        for j in range(8):
            e(f"    v_lshlrev_b32 v{rT+2*j}, 16, v{x+j}")
            e(f"    v_and_b32 v{rT+2*j+1}, s12, v{x+j}")
        for k in range(4):
            e(f"    v_pk_add_f32 {P(rS+2*k)}, {P(rT+4*k)}, {P(rT+4*k+2)}")
        e(f"    v_pk_add_f32 {P(rS)}, {P(rS)}, {P(rS+2)}")
        e(f"    v_pk_add_f32 {P(rS+4)}, {P(rS+4)}, {P(rS+6)}")
        e(f"    v_pk_add_f32 {P(rS)}, {P(rS)}, {P(rS+4)}")
        e(f"    v_add_f32 v{rS}, v{rS}, v{rS+1}")
        dpp(rS)
        e(f"    v_mul_f32 v{rS}, 0xbb800000, v{rS}")
        for j in range(8):
            e(f"    v_pk_add_f32 {P(rT+2*j)}, {P(rT+2*j)}, {P(rS)} op_sel_hi:[1,0]")
        e(f"    v_pk_mul_f32 {P(rS)}, {P(rT)}, {P(rT)}")
        e(f"    v_pk_mul_f32 {P(rS+2)}, {P(rT+2)}, {P(rT+2)}")
        for j in range(2, 8):
            a = rS + 2 * (j & 1)
            e(f"    v_pk_fma_f32 {P(a)}, {P(rT+2*j)}, {P(rT+2*j)}, {P(a)}")
        e(f"    v_pk_add_f32 {P(rS)}, {P(rS)}, {P(rS+2)}")
        gsrc, bsrc = rG + u // 2, rB + u // 2
        if u % 2 == 0:
            e(f"    v_lshlrev_b32 v{rS+4}, 16, v{gsrc}")
            e(f"    v_lshlrev_b32 v{rS+6}, 16, v{bsrc}")
        else:
            e(f"    v_and_b32 v{rS+4}, s12, v{gsrc}")
            e(f"    v_and_b32 v{rS+6}, s12, v{bsrc}")
        e(f"    v_add_f32 v{rS}, v{rS}, v{rS+1}")
        e(f"    v_mul_f32 v{rS+4}, 0x41800000, v{rS+4}")
        dpp(rS)
        e(f"    v_add_f32 v{rS}, 0x3b27c5ac, v{rS}")
        e(f"    v_rsq_f32 v{rS}, v{rS}")
        e("    s_nop 0")
        e(f"    v_mul_f32 v{rS+4}, v{rS}, v{rS+4}")
        for j in range(8):
            e(f"    v_pk_fma_f32 {P(rT+2*j)}, {P(rT+2*j)}, {P(rS+4)}, {P(rS+6)} op_sel_hi:[1,0,0]")
        for j in range(8):
            e(f"    v_cvt_pk_bf16_f32 v{x+j}, v{rT+2*j}, v{rT+2*j+1}")
        for h in range(2):
            b = x + 4 * h
            e(f"    global_store_dwordx4 v{vA}, v[{b}:{b+3}], s[10:11] offset:{u*512+h*256} {stf}")
    if kind in ("rw", "wr"):
        e("    s_waitcnt vmcnt(0)")
    if ts:
        e("    s_memrealtime s[34:35]")
        e("    s_waitcnt vmcnt(0)")
        e("    s_memrealtime s[26:27]")
        e("    s_memtime s[30:31]")
        e("    s_getreg_b32 s16, hwreg(HW_REG_XCC_ID)")
        e("    s_getreg_b32 s17, hwreg(HW_REG_HW_ID)")
        e("    s_waitcnt lgkmcnt(0)")
        e("    s_sub_u32 s28, s30, s28")
    if ts == 2:
        lane = 0
        for r in (20, 22, 24, 32, 26):
            e(f"    s_not_b32 s3, s{r}")
            e(f"    v_writelane_b32 v8, s3, {lane}")
            e(f"    v_writelane_b32 v8, s{r}, {lane+1}")
            lane += 2
        e(f"    v_writelane_b32 v8, s28, {lane}")
        e("    s_sub_u32 s3, s26, s20")
        e(f"    v_writelane_b32 v8, s3, {lane+1}")
        e("    s_sub_u32 s3, s22, s20")
        e(f"    v_writelane_b32 v8, s3, {lane+2}")
        e("    s_sub_u32 s3, s24, s22")
        e(f"    v_writelane_b32 v8, s3, {lane+3}")
        e("    s_not_b32 s3, s3")
        e(f"    v_writelane_b32 v8, s3, {lane+4}")
        e("    s_sub_u32 s3, s26, s34")
        e(f"    v_writelane_b32 v8, s3, {lane+5}")
        e("    v_and_b32 v3, 63, v0")
        e("    v_lshlrev_b32 v3, 2, v3")
        e("    s_mov_b64 exec, 0xffff")
        e("    global_atomic_umax v3, v8, s[14:15]")
    if ts == 1:
        e("    v_lshrrev_b32 v3, 6, v0")
        e(f"    s_mul_i32 s3, s2, {W}")
        e("    v_add_u32 v3, s3, v3")
        e("    v_lshlrev_b32 v3, 6, v3")
        for i, r in enumerate((20, 22, 24, 32, 34, 26, 28, 16, 17)):
            e(f"    v_mov_b32 v{8+i}, s{r}")
        e("    v_and_b32 v2, 63, v0")
        e("    v_cmp_eq_u32 vcc, 0, v2")
        e("    s_and_saveexec_b64 s[18:19], vcc")
        e("    global_store_dwordx4 v3, v[8:11], s[14:15]")
        e("    global_store_dwordx4 v3, v[12:15], s[14:15] offset:16")
        e("    global_store_dword v3, v16, s[14:15] offset:32")
    e("L_end:")
    e("    s_endpgm")
    e('.section .rodata,"a"')
    e(".p2align 6")
    e(f".amdhsa_kernel {NAME}")
    e(f"  .amdhsa_next_free_vgpr {nv}")
    e(f"  .amdhsa_next_free_sgpr {40 if ts else 16}")
    e(f"  .amdhsa_accum_offset {al(nv,4)}")
    e("  .amdhsa_group_segment_fixed_size 0")
    e("  .amdhsa_kernarg_size 48")
    e("  .amdhsa_user_sgpr_count 2")
    e("  .amdhsa_user_sgpr_kernarg_segment_ptr 1")
    e("  .amdhsa_system_sgpr_workgroup_id_x 1")
    e("  .amdhsa_float_denorm_mode_32 3")
    e(".end_amdhsa_kernel")
    return "\n".join(l.rstrip() for l in L) + "\n"

if __name__ == "__main__":
    kw = {}
    out = sys.argv[1]
    for a in sys.argv[2:]:
        k, v = a.split("=")
        kw[k] = int(v) if v.isdigit() else v.replace("+", " ")
    open(out, "w").write(gen(**kw))
```
